```python
import torch

def _softmax(x, axis=-1):
    return torch.softmax(x, dim=axis)
def _gelu(x):
    return torch.nn.functional.gelu(x, approximate="tanh")
def _silu(x):
    return torch.nn.functional.silu(x)
def _sigmoid(x):
    return torch.sigmoid(x)
def _layernorm(x, axis=-1, eps=1e-5):
    m = x.mean(dim=axis, keepdim=True)
    v = x.var(dim=axis, keepdim=True, unbiased=False)
    return (x - m) / torch.sqrt(v + eps)
def _scatter_add(tgt, idx, src, axis=0):
    return tgt.clone().index_add_(axis, idx, src)
def _segment_sum(src, seg, n):
    out = torch.zeros((n,) + src.shape[1:], dtype=src.dtype)
    return out.index_add_(0, seg, src)
def _pad(x, pw):
    flat = tuple(v for pair in reversed(pw) for v in pair)
    return torch.nn.functional.pad(x, flat)

kernel_name = 'concat_heads__linear_kernel_hedgehog__linear_attn_block__prompt'

def setup_inputs():

    _w = (lambda a: (lambda t: t.to(torch.bfloat16) if t.is_floating_point() else t)(torch.as_tensor(a)))
    def _A_setup():
        B, S, D, H = 1, 2048, 512, 32
        Dh = D // H
        return {
            "x": _w((lambda *s: torch.randn(*s, dtype=torch.bfloat16) * 0.4)(B, S, D)),
            "wqkv": _w((lambda *s: torch.randn(*s, dtype=torch.bfloat16) * 0.4)(D, 3 * D)),
            "w_phi": _w((lambda *s: torch.randn(*s, dtype=torch.bfloat16) * 0.4)(H, Dh, Dh) * (Dh ** -0.5)),
            "wo": _w((lambda *s: torch.randn(*s, dtype=torch.bfloat16) * 0.05)(D, D)),
        }
    _A_in = _A_setup()

    def _B_setup():
        B, S, D = 1, 2048, 512
        return {
            "x": _w((lambda *s: torch.randn(*s, dtype=torch.bfloat16) * 0.05)(B, S, D)),
            "wqkv": _w((lambda *s: torch.randn(*s, dtype=torch.bfloat16) * 0.8)(D, 3 * D)),
            "wo": _w((lambda *s: torch.randn(*s, dtype=torch.bfloat16) * 0.4)(D, D)),
        }
    _B_in = _B_setup()

    return {
        "A_x": _A_in["x"],
        "A_wqkv": _A_in["wqkv"],
        "A_w_phi": _A_in["w_phi"],
        "A_wo": _A_in["wo"],
        "B_x": _B_in["x"],
        "B_wqkv": _B_in["wqkv"],
        "B_wo": _B_in["wo"],
    }

def reference(A_x, A_wqkv, A_w_phi, A_wo, B_x, B_wqkv, B_wo):
    def _A_ref(x, wqkv, w_phi, wo):
        B, S, D = x.shape
        H = 32; Dh = D // H
        qkv = (lambda x, *d: x.permute(*d))((x @ wqkv).reshape(B, S, 3, H, Dh), 2, 0, 3, 1, 4)
        q, k, v = qkv[0], qkv[1], qkv[2]
        pq = torch.einsum("bhsd,hdf->bhsf", q, w_phi)
        pk = torch.einsum("bhsd,hdf->bhsf", k, w_phi)
        phi_q = torch.concatenate([_softmax(pq, axis=-1), _softmax(-pq, axis=-1)], axis=-1)
        phi_k = torch.concatenate([_softmax(pk, axis=-1), _softmax(-pk, axis=-1)], axis=-1)
        kv = torch.einsum("bhsf,bhsd->bhfd", phi_k, v)
        z  = torch.einsum("bhsf->bhf", phi_k)
        num = torch.einsum("bhqf,bhfd->bhqd", phi_q, kv)
        den = torch.einsum("bhqf,bhf->bhq", phi_q, z)[..., None] + 1e-6
        o = num / den
        return (lambda x, *d: x.permute(*d))(o, 0, 2, 1, 3).reshape(B, S, D) @ wo

    def _B_ref(x, wqkv, wo):
        B, S, D = x.shape
        H = 32; Dh = D // H
        qkv = (lambda x, *d: x.permute(*d))((x @ wqkv).reshape(B, S, 3, H, Dh), 2, 0, 3, 1, 4)
        q, k, v = qkv[0], qkv[1], qkv[2]
        phi = lambda t: torch.where(t > 0, t + 1, torch.exp(t)) + 1e-6
        pq, pk = phi(q), phi(k)
        kv = torch.einsum("bhsd,bhse->bhde", pk, v)
        z = torch.einsum("bhsd->bhd", pk)
        num = torch.einsum("bhqd,bhde->bhqe", pq, kv)
        den = torch.einsum("bhqd,bhd->bhq", pq, z)[..., None] + 1e-6
        o = num / den
        return (lambda x, *d: x.permute(*d))(o, 0, 2, 1, 3).reshape(B, S, D) @ wo

    a = _A_ref(A_x, A_wqkv, A_w_phi, A_wo)
    b = _B_ref(B_x, B_wqkv, B_wo)
    return torch.concatenate([a, b], axis=-1)
```

```python
import re

TRANS = ("v_exp_f32", "v_log_f32", "v_rcp_f32", "v_rsq_f32", "v_sqrt_f32", "v_sin_f32", "v_cos_f32")

def parse_regs(tok):
    tok = tok.strip()
    neg = tok.lstrip("-")
    if neg.startswith("abs(") or neg.startswith("|"):
        neg = neg.strip("|").replace("abs(", "").rstrip(")")
    tok = neg
    m = re.fullmatch(r"([vsa])(\d+)", tok)
    if m: return [(m.group(1), int(m.group(2)))]
    m = re.fullmatch(r"([vsa])\[(\d+):(\d+)\]", tok)
    if m: return [(m.group(1), i) for i in range(int(m.group(2)), int(m.group(3)) + 1)]
    if tok == "vcc": return [("s", 106), ("s", 107)]
    if tok == "vcc_lo": return [("s", 106)]
    if tok == "vcc_hi": return [("s", 107)]
    if tok == "m0": return [("s", 124)]
    if tok == "exec": return [("s", 126), ("s", 127)]
    if tok == "exec_lo": return [("s", 126)]
    if tok == "exec_hi": return [("s", 127)]
    return []

def split_ops(rest):
    out, cur, depth = [], "", 0
    for ch in rest:
        if ch in "[(": depth += 1
        if ch in "])": depth -= 1
        if ch == "," and depth == 0:
            out.append(cur.strip()); cur = ""
        else:
            cur += ch
    if cur.strip(): out.append(cur.strip())
    return out

class Ins:
    __slots__ = ("text", "op", "kind", "wr", "rd", "info")
    def __init__(self, text):
        self.text = text
        t = text.split(";")[0].strip()
        self.wr, self.rd, self.info = [], [], {}
        if not t or t.endswith(":") or t.startswith("."):
            self.op, self.kind = None, "label" if t.endswith(":") else "none"
            return
        parts = t.split(None, 1)
        op = parts[0]; rest = parts[1] if len(parts) > 1 else ""
        op = re.sub(r"_e(32|64)$", "", op)
        self.op = op
        ops = split_ops(rest)
        ops2 = []
        for o in ops:
            o = o.split()
            ops2.append(o[0] if o else "")
        mods = rest
        R = parse_regs
        if op.startswith("v_mfma"):
            self.kind = "mfma"
            self.wr = R(ops2[0]); self.info["A"] = R(ops2[1]); self.info["B"] = R(ops2[2]); self.info["C"] = R(ops2[3])
            self.rd = self.info["A"] + self.info["B"] + self.info["C"]
            self.info["passes"] = 8 if "32x32" in op else 4
        elif op.startswith("v_"):
            self.kind = "valu"
            if op.startswith("v_cmp"):
                self.wr = R(ops2[0]); self.rd = sum((R(o) for o in ops2[1:]), [])
            elif op. startswith("v_readfirstlane") or op.startswith("v_readlane"):
                self.wr = R(ops2[0]); self.rd = sum((R(o) for o in ops2[1:]), []); self.info["readlane"] = True
            elif op.startswith("v_permlane") and "swap" in op:
                self.wr = R(ops2[0]) + R(ops2[1]); self.rd = list(self.wr); self.info["perm"] = True
            elif op in ("v_add_co_u32", "v_sub_co_u32", "v_addc_co_u32", "v_subb_co_u32"):
                self.wr = R(ops2[0]) + R(ops2[1]); self.rd = sum((R(o) for o in ops2[2:]), [])
            else:
                self.wr = R(ops2[0]); self.rd = sum((R(o) for o in ops2[1:]), [])
                if op.startswith("v_fmac") or op.startswith("v_dot2c") or op.startswith("v_pk_fmac") or op == "v_writelane_b32":
                    self.rd += self.wr
                if op.startswith("v_cndmask") and len(ops2) == 3:
                    self.rd += [("s", 106), ("s", 107)]
            if op in TRANS: self.info["trans"] = True
            if "dpp" in op or "row_" in mods or "quad_perm" in mods: self.info["dpp"] = True
        elif op.startswith("ds_"):
            self.kind = "ds"
            if op.startswith("ds_read") or op.startswith("ds_bpermute") or op.startswith("ds_swizzle"):
                self.wr = R(ops2[0]); self.rd = sum((R(o) for o in ops2[1:]), [])
            else:
                self.rd = sum((R(o) for o in ops2), [])
        elif op.startswith("buffer_") or op.startswith("global_"):
            self.kind = "vmem"
            islds = " lds" in (" " + mods) or "_lds_" in op
            if op.startswith("buffer_load") or op.startswith("global_load"):
                if islds:
                    self.rd = sum((R(o) for o in ops2), []) + [("s", 124)]; self.info["lds"] = True
                else:
                    self.wr = R(ops2[0]); self.rd = sum((R(o) for o in ops2[1:]), [])
            elif op.startswith("buffer_store"):
                self.rd = sum((R(o) for o in ops2), []); self.info["data"] = R(ops2[0])
                self.info["wide"] = ("x3" in op or "x4" in op)
            elif op.startswith("global_store"):
                self.rd = sum((R(o) for o in ops2), []); self.info["data"] = R(ops2[1])
                self.info["wide"] = ("x3" in op or "x4" in op)
            elif "atomic" in op:
                self.rd = sum((R(o) for o in ops2), [])
                if " sc0" in mods: self.wr = R(ops2[0])
            elif op in ("buffer_inv", "buffer_wbl2"):
                pass
            else:
                raise ValueError("unknown vmem " + text)
        elif op.startswith("s_"):
            self.kind = "salu"
            if op == "s_nop":
                self.info["nop"] = int(ops2[0], 0) + 1
            elif op.startswith("s_cmp") or op.startswith("s_cbranch") or op in ("s_branch", "s_barrier", "s_waitcnt", "s_endpgm", "s_setprio", "s_sleep", "s_bitcmp1_b32", "s_bitcmp0_b32"):
                self.rd = sum((R(o) for o in ops2), [])
            else:
                self.wr = R(ops2[0]); self.rd = sum((R(o) for o in ops2[1:]), [])
                if "saveexec" in op: self.wr += [("s", 126), ("s", 127)]
        else:
            raise ValueError("unknown instr " + text)

def need_states(p, c):
    n = 0
    pw = set(p.wr); cr = set(c.rd); cw = set(c.wr)
    pv = {r for r in pw if r[0] in "va"}
    ps = {r for r in pw if r[0] == "s"}
    if p.kind == "valu":
        if c.kind == "mfma" and pv & cr: n = max(n, 2)
        if p.info.get("trans") and c.kind in ("valu",) and not c.info.get("trans") and (pv & cr): n = max(n, 1)
        if p.info.get("trans") and c.kind == "valu" and (pv & cr): n = max(n, 1)
        if c.kind == "valu" and c.info.get("perm") and (pv & cr): n = max(n, 2)
        if c.kind == "valu" and c.info.get("dpp") and (pv & cr): n = max(n, 2)
        if c.kind == "valu" and c.info.get("readlane") and (pv & cr): n = max(n, 1)
        if ps:
            if c.kind == "valu" and (ps & cr): n = max(n, 4 if c.info.get("readlane") else 2)
            if c.kind == "vmem" and (ps & cr): n = max(n, 5)
            if c.kind == "salu" and (ps & cr): n = max(n, 4)
            if c.kind == "mfma" and (("s", 126) in ps): n = max(n, 4)
    if p.kind == "mfma":
        P = p.info["passes"]
        D = set(p.wr)
        big = 12 if P == 8 else 8
        if c.kind == "mfma":
            C = c.info["C"]
            if set(c.info["A"] + c.info["B"]) & D: n = max(n, big)
            if set(C) & D:
                if list(C) == list(p.wr) and c.info["passes"] == P: pass
                else: n = max(n, 10 if P == 8 else 6)
            if (set(c.wr) & D) and not (set(C) & D): n = max(n, big)
        elif c.kind in ("valu", "ds", "vmem"):
            if (cr | cw) & D: n = max(n, big)
        if c.kind == "valu" and set(c.wr) & set(p.info["C"]): n = max(n, 7 if P == 8 else 3)
    if p.kind == "salu":
        if ("s", 124) in ps and c.kind == "vmem" and c.info.get("lds"): n = max(n, 1)
    if p.kind == "vmem" and p.info.get("wide") and p.info.get("data"):
        if c.kind in ("valu", "mfma") and set(p.info["data"]) & cw: n = max(n, 2)
        elif set(p.info["data"]) & cw: n = max(n, 1)
    return n

class Asm:
    def __init__(self):
        self.ins = []
    def __call__(self, text):
        for line in text.split("\n"):
            line = line.strip()
            if line: self.ins.append(Ins(line))
    def extend(self, lst):
        for x in lst: self(x)
    def label(self, name): self(name + ":")
    def finalize(self, window=24):
        out = []
        nadded = 0
        for c in self.ins:
            if c.kind in ("label", "none"):
                out.append(c); continue
            dist = 0; need = 0
            j = len(out) - 1
            while j >= 0 and dist < window:
                p = out[j]
                if p.kind in ("label", "none"):
                    j -= 1; continue
                req = need_states(p, c)
                if req > dist: need = max(need, req - dist)
                dist += p.info.get("nop", 1)
                j -= 1
            while need > 0:
                k = min(need, 16)
                out.append(Ins(f"s_nop {k-1}")); need -= k; nadded += 1
            out.append(c)
        self.ins = out
        return nadded
    def text(self):
        return "\n".join(("" if i.kind == "label" else "  ") + i.text for i in self.ins)

def zip_streams(main, side, ratio=None):
    out = []
    n, m = len(main), len(side)
    si = 0
    for i, x in enumerate(main):
        out.append(x)
        tgt = (i + 1) * m // max(n, 1)
        while si < tgt:
            out.append(side[si]); si += 1
    out.extend(side[si:])
    return out
```

```python
import sys
sys.path.insert(0, "dev")
from asmlib import Asm, zip_streams

KNAME = "concat_heads__linear_kernel_hedgehog__linear_attn_block__prompt_kernel"

XR = 0
SLOT = 16384
WK = 98304
WV = XR + 2 * SLOT
PHI = XR
VFR = WV
KVT = XR
WO1 = WV
WO2 = WK
OT = WV
LDS_BYTES = 163840

PART_BASE = 0
PART_STRIDE = 9216
OX_BASE = 4 << 20
WS_USED = 16 << 20

S_X, S_W, S_WO, S_WS, S_OUT, S_DBG, S_PHI = 4, 8, 12, 16, 20, 24, 28
sTB, sHG, sWAVE, sTG, sFH, sXOFF, sWOFF, sC = 32, 33, 34, 35, 36, 37, 38, 39
sT0, sT1, sT2, sT3, sT4, sT5 = 40, 41, 42, 43, 44, 45
sMA, sMB = 46, 48
sEPS = 50
sPART, sOX = 51, 52
sTS = 60

vLANE = 1
vXD, vWD, vWOD = 2, 3, 4
vXR = 5
vWR = 9
vPW = 10
vPR0, vPR1 = 11, 12
vL16 = 13
vT = 14
ACC0, ACC1 = 16, 32
WF0, WF1 = 48, 64
E = 80
PHIW = 112
XF = 128

def srd(r): return f"s[{r}:{r+3}]"
def vr(b, n): return f"v[{b}:{b+n-1}]" if n > 1 else f"v{b}"

class Prog:
    def __init__(self, br, opts):
        self.br = br; self.o = opts
        self.a = Asm()
        self.vm = []
        self.L = f"P{br}_"
    def I(self, s): self.a(s)
    def vmem(self, s, tag):
        self.a(s); self.vm.append(tag)
    def wait_tags(self, tags, extra=""):
        last = max(i for i, t in enumerate(self.vm) if t in tags)
        n = len(self.vm) - 1 - last
        assert n <= 63
        self.I(f"s_waitcnt vmcnt({n}){extra}")
    def stamp(self, k):
        if self.o.get("ts"):
            self.I(f"s_memrealtime s[{sTS+2*k}:{sTS+2*k+1}]")

    def dma_x(self, c, slot):
        for j in range(2):
            self.I(f"s_add_u32 s{sT0}, s{sXOFF}, {c*128 + j*65536}")
            self.I(f"s_add_u32 m0, s{sT1}, {XR + slot*SLOT + j*8192}")
            self.vmem(f"buffer_load_dwordx4 v{vXD}, {srd(S_X)}, s{sT0} offen lds", ("x", c))
    def dma_w(self, panel, c, base):
        poff = {"q": 0, "k": 1024, "v": 2048}[panel]
        self.I(f"s_add_u32 s{sT0}, s{sWOFF}, {c*64*3072 + poff}")
        self.I(f"s_add_u32 m0, s{sT1}, {base + c*8192}")
        self.vmem(f"buffer_load_dwordx4 v{vWD}, {srd(S_W)}, s{sT0} offen lds", (panel, c))
    def dma_wo(self, half, base):
        for j in range(8):
            self.I(f"s_add_u32 s{sT0}, s{sT2}, {(half*256 + j*32)*1024}")
            self.I(f"s_add_u32 m0, s{sT1}, {base + j*8192}")
            self.vmem(f"buffer_load_dwordx4 v{vWOD}, {srd(S_WO)}, s{sT0} offen lds", ("wo", half))

    def prologue(self):
        I = self.I; br = self.br
        if br == 0:
            I("s_load_dwordx4 s[44:47], s[0:1], 0")
            I("s_load_dwordx4 s[52:55], s[0:1], 16")
        else:
            I("s_load_dwordx4 s[44:47], s[0:1], 32")
            I("s_load_dwordx2 s[54:55], s[0:1], 48")
            I("s_load_dwordx2 s[52:53], s[0:1], 16")
        I("s_load_dwordx2 s[56:57], s[0:1], 56")
        I("s_load_dwordx4 s[60:63], s[0:1], 64")
        I(f"s_lshr_b32 s{sT0}, s2, 3")
        I(f"s_and_b32 s{sTB}, s2, 1"); I(f"s_lshl_b32 s{sTB}, s{sTB}, 3")
        I(f"s_and_b32 s{sT1}, s{sT0}, 7"); I(f"s_add_u32 s{sTB}, s{sTB}, s{sT1}")
        I(f"s_bfe_u32 s{sHG}, s2, 0x10001"); I(f"s_lshl_b32 s{sHG}, s{sHG}, 2")
        I(f"s_lshr_b32 s{sT1}, s{sT0}, 3"); I(f"s_add_u32 s{sHG}, s{sHG}, s{sT1}")
        I(f"v_and_b32 v{vLANE}, 63, v0")
        I(f"v_lshrrev_b32 v{vT}, 6, v0")
        I(f"v_readfirstlane_b32 s{sWAVE}, v{vT}")
        I(f"s_and_b32 s{sTG}, s{sWAVE}, 3"); I(f"s_lshr_b32 s{sFH}, s{sWAVE}, 2")
        t, u = vT, vT + 1
        I(f"s_and_b32 s{sT0}, s{sWAVE}, 1"); I(f"s_lshl_b32 s{sT0}, s{sT0}, 2")
        I(f"v_lshrrev_b32 v{t}, 4, v{vLANE}"); I(f"v_add_u32 v{t}, s{sT0}, v{t}")
        I(f"v_and_b32 v{u}, 7, v{vLANE}"); I(f"v_xor_b32 v{t}, v{t}, v{u}"); I(f"v_lshlrev_b32 v{t}, 4, v{t}")
        I(f"v_lshrrev_b32 v{u}, 3, v{vLANE}"); I(f"v_lshl_add_u32 v{vXD}, v{u}, 10, v{t}")
        I(f"v_bfe_u32 v{t}, v{vLANE}, 4, 1"); I(f"v_lshlrev_b32 v{t}, 2, v{t}")
        I(f"v_and_b32 v{vWD}, 7, v{vLANE}"); I(f"v_xor_b32 v{t}, v{t}, v{vWD}"); I(f"v_lshlrev_b32 v{t}, 4, v{t}")
        I(f"v_mul_u32_u24 v{vWD}, 3072, v{u}"); I(f"v_add_u32 v{vWD}, v{vWD}, v{t}")
        I(f"v_lshrrev_b32 v{u}, 4, v{vLANE}"); I(f"v_lshlrev_b32 v{t}, 2, v{u}")
        I(f"v_and_b32 v{vWOD}, 15, v{vLANE}"); I(f"v_xor_b32 v{t}, v{t}, v{vWOD}"); I(f"v_lshlrev_b32 v{t}, 4, v{t}")
        I(f"v_lshl_add_u32 v{vWOD}, v{u}, 10, v{t}")
        I(f"s_lshl_b32 s{sXOFF}, s{sTB}, 17"); I(f"s_lshl_b32 s{sT0}, s{sWAVE}, 13"); I(f"s_add_u32 s{sXOFF}, s{sXOFF}, s{sT0}")
        I(f"s_mul_i32 s{sWOFF}, s{sWAVE}, {8*3072}"); I(f"s_lshl_b32 s{sT0}, s{sHG}, 7"); I(f"s_add_u32 s{sWOFF}, s{sWOFF}, s{sT0}")
        I(f"s_lshl_b32 s{sT1}, s{sWAVE}, 10")
        I("s_waitcnt lgkmcnt(0)")
        def mk(r, lo, size):
            I(f"s_mov_b32 s{r}, s{lo}"); I(f"s_mov_b32 s{r+1}, s{lo+1}"); I(f"s_mov_b32 s{r+2}, {hex(size)}"); I(f"s_mov_b32 s{r+3}, 0x20000")
        mk(S_X, 44, 0x200000); mk(S_W, 46, 0x180000); mk(S_PHI, 52, 0x4000); mk(S_WO, 54, 0x80000)
        mk(S_OUT, 56, 0x400000); mk(S_DBG, 60, 256); mk(S_WS, 62, WS_USED)
        self.stamp(0)
        if br == 0:
            I(f"v_and_b32 v{t}, 15, v{vLANE}"); I(f"v_lshlrev_b32 v{t}, 1, v{t}")
            I(f"v_lshrrev_b32 v{u}, 5, v{vLANE}"); I(f"v_lshl_add_u32 v{t}, v{u}, 7, v{t}")
            I(f"s_lshl_b32 s{sT0}, s{sHG}, 2"); I(f"s_lshl_b32 s{sT2}, s{sFH}, 1"); I(f"s_add_u32 s{sT0}, s{sT0}, s{sT2}"); I(f"s_lshl_b32 s{sT0}, s{sT0}, 9")
            for a in range(2):
                for j in range(8):
                    d = j if j < 4 else 8 + j - 4
                    self.vmem(f"buffer_load_ushort v{E + a*8 + j}, v{t}, {srd(S_PHI)}, s{sT0} offen offset:{a*512 + d*32}", ("phi",))
        for c in range(6):
            self.dma_x(c, c); self.dma_w("k", c, WK)
        self.dma_w("k", 6, WK); self.dma_w("k", 7, WK)
        I(f"v_and_b32 v{t}, 31, v{vLANE}"); I(f"s_lshl_b32 s{sT0}, s{sTG}, 5"); I(f"v_add_u32 v{u}, s{sT0}, v{t}")
        I(f"v_lshlrev_b32 v{vPW}, 6, v{u}")
        I(f"v_lshlrev_b32 v{u}, 7, v{u}")
        I(f"v_bfe_u32 v{t}, v{vLANE}, 1, 3")
        I(f"v_lshrrev_b32 v{vXR}, 5, v{vLANE}")
        I(f"v_xor_b32 v{vXR}, v{vXR}, v{t}")
        I(f"v_lshl_add_u32 v{vPW}, v{vXR}, 3, v{vPW}")
        I(f"v_lshl_add_u32 v{vXR}, v{vXR}, 4, v{u}")
        for s in range(1, 4):
            I(f"v_xor_b32 v{vXR+s}, {32*s}, v{vXR}")
        I(f"v_lshrrev_b32 v{t}, 5, v{vLANE}"); I(f"v_lshlrev_b32 v{t}, 3, v{t}")
        I(f"v_bfe_u32 v{u}, v{vLANE}, 2, 2"); I(f"v_add_u32 v{t}, v{t}, v{u}"); I(f"v_lshlrev_b32 v{vWR}, 7, v{t}")
        I(f"v_bfe_u32 v{t}, v{vLANE}, 4, 1"); I(f"v_lshlrev_b32 v{t}, 1, v{t}")
        I(f"v_bfe_u32 v{u}, v{vLANE}, 1, 1"); I(f"v_add_u32 v{t}, v{t}, v{u}")
        I(f"s_lshl_b32 s{sT0}, s{sFH}, 2"); I(f"v_add_u32 v{t}, s{sT0}, v{t}")
        I(f"v_bfe_u32 v{u}, v{vLANE}, 3, 1"); I(f"v_lshlrev_b32 v{u}, 2, v{u}"); I(f"v_xor_b32 v{t}, v{t}, v{u}")
        I(f"v_lshl_add_u32 v{vWR}, v{t}, 4, v{vWR}")
        I(f"v_and_b32 v{u}, 1, v{vLANE}"); I(f"v_lshl_add_u32 v{vWR}, v{u}, 3, v{vWR}")
        I(f"v_lshrrev_b32 v{t}, 5, v{vLANE}")
        I(f"v_bfe_u32 v{u}, v{vLANE}, 2, 2"); I(f"v_lshl_add_u32 v{u}, v{t}, 2, v{u}")
        I(f"v_lshlrev_b32 v{vPR0}, 6, v{u}")
        I(f"v_lshlrev_b32 v{t}, 1, v{t}"); I(f"v_bfe_u32 v{u}, v{vLANE}, 3, 1"); I(f"v_add_u32 v{t}, v{t}, v{u}")
        I(f"v_bfe_u32 v{u}, v{vLANE}, 4, 1"); I(f"v_lshlrev_b32 v{u}, 2, v{u}"); I(f"v_xor_b32 v{t}, v{t}, v{u}")
        I(f"v_and_b32 v{u}, 3, v{vLANE}"); I(f"v_xor_b32 v{t}, v{t}, v{u}")
        I(f"v_lshl_add_u32 v{vPR0}, v{t}, 3, v{vPR0}")
        I(f"v_xor_b32 v{vPR1}, 32, v{vPR0}"); I(f"v_add_u32 v{vPR1}, 512, v{vPR1}")
        I(f"v_lshlrev_b32 v{vL16}, 4, v{vLANE}")
        I(f"s_mov_b32 s{sC}, 0x3fb8aa3b")
        I(f"s_mov_b32 s{sEPS}, 0x358637bd")
        I(f"s_mov_b32 s{sMA}, 0x0000ffff"); I(f"s_mov_b32 s{sMA+1}, 0x0000ffff")
        I(f"s_mov_b32 s{sMB}, 0xffff0000"); I(f"s_mov_b32 s{sMB+1}, 0xffff0000")
        I(f"s_lshl_b32 s{sT0}, s{sHG}, 4"); I(f"s_add_u32 s{sT0}, s{sT0}, {br*128}"); I(f"s_mul_i32 s{sPART}, s{sT0}, {PART_STRIDE}"); I(f"s_add_u32 s{sPART}, s{sPART}, {PART_BASE}")
        I(f"s_lshl_b32 s{sOX}, s{sTB}, 17"); I(f"s_add_u32 s{sOX}, s{sOX}, {OX_BASE + br*(2<<20)}")
        if br == 0:
            self.wait_tags({("phi",)})
            for a in range(2):
                for j in range(4):
                    I(f"v_lshl_or_b32 v{PHIW + a*4 + j}, v{E + a*8 + 2*j + 1}, 16, v{E + a*8 + 2*j}")
            for j in range(4):
                I(f"v_cndmask_b32 v{PHIW + j}, 0, v{PHIW + j}, s[{sMA}:{sMA+1}]")
                I(f"v_cndmask_b32 v{PHIW + 4 + j}, 0, v{PHIW + 4 + j}, s[{sMB}:{sMB+1}]")

    def wfrag_reads(self, base, c, dst, areg=None):
        out = []
        areg = vWR if areg is None else areg
        for s in range(4):
            off = base + c*8192 + s*2048
            out.append(f"ds_read_b64_tr_b16 {vr(dst+4*s, 2)}, v{areg} offset:{off}")
            out.append(f"ds_read_b64_tr_b16 {vr(dst+4*s+2, 2)}, v{areg} offset:{off+512}")
        return out

    def k_phase(self):
        I = self.I
        hiW, hiX = E + 16, E + 20
        I(f"v_add_u32 v{hiW}, {WK}, v{vWR}")
        for s in range(4): I(f"v_add_u32 v{hiX+s}, 0x10000, v{vXR+s}")
        for c in range(8):
            slot = c if c < 6 else c - 6
            self.wait_tags({("x", c), ("k", c)})
            I("s_barrier")
            if c == 1: self.dma_x(6, 0)
            if c == 2: self.dma_x(7, 1)
            if 3 <= c <= 6:
                self.dma_w("v", 2*(c-3), WV); self.dma_w("v", 2*(c-3)+1, WV)
            if c == 7:
                for cc in range(7): self.dma_w("q", cc, WK)
            for s in range(4):
                off = XR + slot*SLOT
                if off < 65536: I(f"ds_read_b128 {vr(XF+16*c+4*s, 4)}, v{vXR+s} offset:{off}")
                else: I(f"ds_read_b128 {vr(XF+16*c+4*s, 4)}, v{hiX+s} offset:{off-65536}")
            for x in self.wfrag_reads(0, c, WF0, hiW): I(x)
            for s in range(4):
                I(f"s_waitcnt lgkmcnt({6-2*s})")
                cin = "0" if (c == 0 and s == 0) else vr(ACC0, 16)
                I(f"v_mfma_f32_32x32x16_bf16 {vr(ACC0,16)}, {vr(WF0+4*s,4)}, {vr(XF+16*c+4*s,4)}, {cin}")
        I("s_barrier")
        self.dma_w("q", 7, WK)

    def gemm_phase(self, base, acc, swap, areg):
        out = []
        bufs = [WF0, WF1]
        out += self.wfrag_reads(base, 0, bufs[0], areg)
        for c in range(8):
            if c < 7: out += self.wfrag_reads(base, c+1, bufs[(c+1) & 1], areg)
            for s in range(4):
                rem = (8 if c < 7 else 0) + (6 - 2*s)
                out.append(f"s_waitcnt lgkmcnt({min(rem,15)})")
                cin = "0" if (c == 0 and s == 0) else vr(acc, 16)
                wf = vr(bufs[c & 1] + 4*s, 4); xf = vr(XF + 16*c + 4*s, 4)
                if swap: out.append(f"v_mfma_f32_32x32x16_bf16 {vr(acc,16)}, {xf}, {wf}, {cin}")
                else:    out.append(f"v_mfma_f32_32x32x16_bf16 {vr(acc,16)}, {wf}, {xf}, {cin}")
        return out

    def feat_A(self, acc):
        o = []
        KB = E
        P = E + 8
        PH = WF0
        X = WF1
        for j in range(8): o.append(f"v_cvt_pk_bf16_f32 v{KB+j}, v{acc+2*j}, v{acc+2*j+1}")
        o.append(f"v_mfma_f32_32x32x16_bf16 {vr(P,16)}, {vr(PHIW,4)}, {vr(KB,4)}, 0")
        o.append(f"v_mfma_f32_32x32x16_bf16 {vr(P,16)}, {vr(PHIW+4,4)}, {vr(KB+4,4)}, {vr(P,16)}")
        M = E + 24
        for a in range(2):
            x = P + 8*a
            m, n, t, u = M + 4*a, M + 4*a + 1, M + 4*a + 2, M + 4*a + 3
            o.append(f"v_max3_f32 v{m}, v{x}, v{x+1}, v{x+2}")
            o.append(f"v_max3_f32 v{n}, -v{x}, -v{x+1}, -v{x+2}")
            o.append(f"v_max3_f32 v{t}, v{x+3}, v{x+4}, v{x+5}")
            o.append(f"v_max3_f32 v{u}, -v{x+3}, -v{x+4}, -v{x+5}")
            o.append(f"v_max3_f32 v{m}, v{m}, v{x+6}, v{x+7}")
            o.append(f"v_max3_f32 v{n}, v{n}, -v{x+6}, -v{x+7}")
            o.append(f"v_max_f32 v{m}, v{m}, v{t}")
            o.append(f"v_max_f32 v{n}, v{n}, v{u}")
        for a in range(2):
            m, n = M + 4*a, M + 4*a + 1
            o.append(f"v_permlane32_swap_b32 v{m}, v{n}")
        for a in range(2):
            m, n = M + 4*a, M + 4*a + 1
            o.append(f"v_max_f32 v{m}, v{m}, v{n}")
        for a in range(2):
            m, n = M + 4*a, M + 4*a + 1
            o.append(f"v_mul_f32 v{m}, s{sC}, v{m}")
        for a in range(2):
            m, n = M + 4*a, M + 4*a + 1
            o.append(f"v_mov_b32 v{n}, v{m}")
        for a in range(2):
            m, n = M + 4*a, M + 4*a + 1
            o.append(f"v_permlane32_swap_b32 v{m}, v{n}")
        for a in range(2):
            x = P + 8*a; m, n = M + 4*a, M + 4*a + 1
            ep, en = X + 8*a, x
            for r in range(8): o.append(f"v_fma_f32 v{ep+r}, v{x+r}, s{sC}, -v{m}")
            for r in range(8): o.append(f"v_fma_f32 v{x+r}, -v{x+r}, s{sC}, -v{n}")
            for r in range(8): o.append(f"v_exp_f32 v{ep+r}, v{ep+r}")
            for r in range(8): o.append(f"v_exp_f32 v{x+r}, v{x+r}")
        for a in range(2):
            x = P + 8*a; ep = X + 8*a
            m, n, t, u = M + 4*a, M + 4*a + 1, M + 4*a + 2, M + 4*a + 3
            o.append(f"v_add_f32 v{m}, v{ep}, v{ep+1}"); o.append(f"v_add_f32 v{n}, v{x}, v{x+1}")
            o.append(f"v_add_f32 v{t}, v{ep+2}, v{ep+3}"); o.append(f"v_add_f32 v{u}, v{x+2}, v{x+3}")
            o.append(f"v_add_f32 v{m}, v{m}, v{ep+4}"); o.append(f"v_add_f32 v{n}, v{n}, v{x+4}")
            o.append(f"v_add_f32 v{t}, v{t}, v{ep+5}"); o.append(f"v_add_f32 v{u}, v{u}, v{x+5}")
            o.append(f"v_add_f32 v{m}, v{m}, v{ep+6}"); o.append(f"v_add_f32 v{n}, v{n}, v{x+6}")
            o.append(f"v_add_f32 v{t}, v{t}, v{ep+7}"); o.append(f"v_add_f32 v{u}, v{u}, v{x+7}")
            o.append(f"v_add_f32 v{m}, v{m}, v{t}"); o.append(f"v_add_f32 v{n}, v{n}, v{u}")
        for a in range(2):
            o.append(f"v_permlane32_swap_b32 v{M+4*a}, v{M+4*a+1}")
        for a in range(2):
            o.append(f"v_add_f32 v{M+4*a}, v{M+4*a}, v{M+4*a+1}")
        for a in range(2):
            o.append(f"v_rcp_f32 v{M+4*a}, v{M+4*a}")
        for a in range(2):
            o.append(f"v_mov_b32 v{M+4*a+1}, v{M+4*a}")
        for a in range(2):
            o.append(f"v_permlane32_swap_b32 v{M+4*a}, v{M+4*a+1}")
        for a in range(2):
            x = P + 8*a; ep = X + 8*a; m, n = M + 4*a, M + 4*a + 1
            for r in range(8): o.append(f"v_mul_f32 v{ep+r}, v{ep+r}, v{m}")
            for r in range(8): o.append(f"v_mul_f32 v{x+r}, v{x+r}, v{n}")
            for j in range(4): o.append(f"v_cvt_pk_bf16_f32 v{PH+8*a+j}, v{ep+2*j}, v{ep+2*j+1}")
            for j in range(4): o.append(f"v_cvt_pk_bf16_f32 v{PH+8*a+4+j}, v{x+2*j}, v{x+2*j+1}")
        return o

    def feat_B(self, acc):
        o = []
        PH = WF0; X = WF1
        for r in range(16): o.append(f"v_mul_f32 v{X+r}, s{sC}, v{acc+r}")
        for r in range(16): o.append(f"v_min_f32 v{X+r}, 0, v{X+r}")
        for r in range(16): o.append(f"v_exp_f32 v{X+r}, v{X+r}")
        for r in range(16): o.append(f"v_max_f32 v{acc+r}, 0, v{acc+r}")
        for r in range(16): o.append(f"v_add_f32 v{X+r}, v{X+r}, v{acc+r}")
        for r in range(16): o.append(f"v_add_f32 v{X+r}, s{sEPS}, v{X+r}")
        for j in range(8): o.append(f"v_cvt_pk_bf16_f32 v{PH+j}, v{X+2*j}, v{X+2*j+1}")
        return o

    def k_epi(self):
        I = self.I; br = self.br
        PH = WF0
        for x in (self.feat_A(ACC0) if br == 0 else self.feat_B(ACC0)): I(x)
        t = E
        if br == 0:
            I(f"s_lshl_b32 s{sT0}, s{sFH}, 14")
            I(f"v_add_u32 v{t}, s{sT0}, v{vPW}")
            for q in range(1, 4): I(f"v_xor_b32 v{t+q}, {16*q}, v{t}")
            for a in range(2):
                for q in range(4):
                    I(f"ds_write_b64 v{t+q}, {vr(PH+8*a+2*q, 2)} offset:{PHI + a*8192}")
        else:
            I(f"s_lshl_b32 s{sT0}, s{sFH}, 13")
            I(f"v_add_u32 v{t}, s{sT0}, v{vPW}")
            for q in range(1, 4): I(f"v_xor_b32 v{t+q}, {16*q}, v{t}")
            for q in range(4):
                I(f"ds_write_b64 v{t+q}, {vr(PH+2*q, 2)} offset:{PHI}")

    def v_epi_and_kv(self):
        I = self.I; br = self.br
        VB = E
        for j in range(8): I(f"v_cvt_pk_bf16_f32 v{VB+j}, v{ACC1+2*j}, v{ACC1+2*j+1}")
        I("s_waitcnt lgkmcnt(0)")
        I("s_barrier")
        t = E + 8
        I(f"s_lshl_b32 s{sT0}, s{sWAVE}, 11"); I(f"v_add_u32 v{t}, s{sT0}, v{vL16}")
        I(f"ds_write_b128 v{t}, {vr(VB,4)} offset:{VFR}")
        I(f"ds_write_b128 v{t}, {vr(VB+4,4)} offset:{VFR+1024}")
        I("s_waitcnt lgkmcnt(0)")
        I("s_barrier")
        D = ACC0
        AF, BF = WF0, WF1
        if br == 0:
            I(f"s_and_b32 s{sT0}, s{sWAVE}, 1")
            I(f"s_bfe_u32 s{sT2}, s{sWAVE}, 0x10001")
            I(f"s_lshl_b32 s{sT3}, s{sT0}, 1"); I(f"s_add_u32 s{sT3}, s{sT3}, s{sT2}")
            I(f"s_lshl_b32 s{sT4}, s{sT3}, 13")
        else:
            I(f"s_and_b32 s{sT0}, s{sWAVE}, 1")
            I(f"s_lshl_b32 s{sT4}, s{sT0}, 13")
        t0, t1, t2 = E, E + 1, E + 2
        I(f"v_add_u32 v{t0}, s{sT4}, v{vPR0}"); I(f"v_add_u32 v{t1}, s{sT4}, v{vPR1}")
        I(f"s_lshl_b32 s{sT4}, s{sT0}, 13"); I(f"v_add_u32 v{t2}, s{sT4}, v{vL16}")
        zbit = 2 if br == 0 else 1
        I(f"s_bitcmp1_b32 s{sWAVE}, {zbit}")
        I(f"s_cbranch_scc1 {self.L}kvZ")
        for half in range(2):
            for c in range(4):
                cc = half*4 + c
                I(f"ds_read_b64_tr_b16 {vr(AF+4*c,2)}, v{t0} offset:{PHI + cc*1024}")
                I(f"ds_read_b64_tr_b16 {vr(AF+4*c+2,2)}, v{t1} offset:{PHI + cc*1024}")
                I(f"ds_read_b128 {vr(BF+4*c,4)}, v{t2} offset:{VFR + (cc>>1)*2048 + (cc&1)*1024}")
            for c in range(4):
                I(f"s_waitcnt lgkmcnt({9-3*c})")
                cin = "0" if (half == 0 and c == 0) else vr(D,16)
                I(f"v_mfma_f32_32x32x16_bf16 {vr(D,16)}, {vr(AF+4*c,4)}, {vr(BF+4*c,4)}, {cin}")
        I(f"s_branch {self.L}kvJ")
        self.a.label(f"{self.L}kvZ")
        for j in range(4): I(f"v_mov_b32 v{BF+j}, 0x3f803f80")
        for half in range(2):
            for c in range(4):
                cc = half*4 + c
                I(f"ds_read_b64_tr_b16 {vr(AF+4*c,2)}, v{t0} offset:{PHI + cc*1024}")
                I(f"ds_read_b64_tr_b16 {vr(AF+4*c+2,2)}, v{t1} offset:{PHI + cc*1024}")
            for c in range(4):
                I(f"s_waitcnt lgkmcnt({6-2*c})")
                cin = "0" if (half == 0 and c == 0) else vr(D,16)
                I(f"v_mfma_f32_32x32x16_bf16 {vr(D,16)}, {vr(AF+4*c,4)}, {vr(BF,4)}, {cin}")
        self.a.label(f"{self.L}kvJ")
        I("s_nop 11"); I("s_nop 1")
        I(f"s_mul_i32 s{sT4}, s{sTB}, {PART_STRIDE}"); I(f"s_add_u32 s{sT4}, s{sT4}, s{sPART}")
        n_before = len(self.vm)
        if br == 0:
            I(f"s_bitcmp1_b32 s{sWAVE}, 2"); I(f"s_cbranch_scc1 {self.L}pubZ")
            I(f"s_lshl_b32 s{sT5}, s{sT0}, 12"); I(f"s_add_u32 s{sT4}, s{sT4}, s{sT5}")
            I(f"s_cmp_eq_u32 s{sT2}, 0"); I(f"s_cselect_b64 exec, s[{sMA}:{sMA+1}], s[{sMB}:{sMB+1}]")
            for j in range(4):
                I(f"buffer_store_dwordx4 {vr(D+4*j,4)}, v{vL16}, {srd(S_WS)}, s{sT4} offen offset:{j*1024} sc1")
            I(f"s_branch {self.L}pubJ")
            self.a.label(f"{self.L}pubZ")
            I(f"s_lshl_b32 s{sT5}, s{sT3}, 7"); I(f"s_add_u32 s{sT4}, s{sT4}, s{sT5}"); I(f"s_add_u32 s{sT4}, s{sT4}, 8192")
            I(f"v_lshlrev_b32 v{t0}, 1, v{vLANE}")
            I("s_mov_b32 exec_lo, 1"); I("s_mov_b32 exec_hi, 1")
            for j in range(4):
                I(f"buffer_store_dwordx4 {vr(D+4*j,4)}, v{t0}, {srd(S_WS)}, s{sT4} offen offset:{j*16} sc1")
            self.a.label(f"{self.L}pubJ")
            I("s_mov_b64 exec, -1")
            self.vm += [("pub1",)] * 4
        else:
            I(f"s_cmp_ge_u32 s{sWAVE}, 4"); I(f"s_cbranch_scc1 {self.L}pubN")
            I(f"s_bitcmp1_b32 s{sWAVE}, 1"); I(f"s_cbranch_scc1 {self.L}pubZ")
            for r in range(8): I(f"v_cndmask_b32 v{D+r}, v{D+r}, v{D+8+r}, s[{sMB}:{sMB+1}]")
            I(f"s_lshl_b32 s{sT5}, s{sT0}, 11"); I(f"s_add_u32 s{sT4}, s{sT4}, s{sT5}")
            for j in range(2):
                I(f"buffer_store_dwordx4 {vr(D+4*j,4)}, v{vL16}, {srd(S_WS)}, s{sT4} offen offset:{j*1024} sc1")
            I("s_waitcnt vmcnt(0)")
            I(f"s_branch {self.L}pubN")
            self.a.label(f"{self.L}pubZ")
            I(f"s_lshl_b32 s{sT5}, s{sT0}, 7"); I(f"s_add_u32 s{sT4}, s{sT4}, s{sT5}"); I(f"s_add_u32 s{sT4}, s{sT4}, 8192")
            I(f"v_lshlrev_b32 v{t0}, 1, v{vLANE}")
            I("s_mov_b32 exec_lo, 1"); I("s_mov_b32 exec_hi, 1")
            for j in range(4):
                I(f"buffer_store_dwordx4 {vr(D+4*j,4)}, v{t0}, {srd(S_WS)}, s{sT4} offen offset:{j*16} sc1")
            I("s_mov_b64 exec, -1")
            I("s_waitcnt vmcnt(0)")
            self.a.label(f"{self.L}pubN")
        I("s_waitcnt vmcnt(0)")
        self.vm = []
        I("s_barrier")
        self.signal(self.br*8, sHG, "s1")

    def signal(self, base_dw, sidx, name):
        I = self.I
        I(f"s_cmp_eq_u32 s{sWAVE}, 0"); I(f"s_cbranch_scc0 {self.L}{name}")
        I(f"s_add_u32 s{sT0}, s{sidx}, {base_dw}"); I(f"s_lshl_b32 s{sT0}, s{sT0}, 2")
        I(f"v_mov_b32 v{E}, 1"); I(f"v_mov_b32 v{E+1}, 0")
        I("s_mov_b64 exec, 1")
        I(f"buffer_atomic_add v{E}, v{E+1}, {srd(S_DBG)}, s{sT0} offen")
        I("s_mov_b64 exec, -1")
        self.a.label(f"{self.L}{name}")

    def poll(self, base_dw, sidx, target, name):
        I = self.I
        I(f"s_cmp_eq_u32 s{sWAVE}, 0"); I(f"s_cbranch_scc0 {self.L}{name}_w")
        I(f"s_add_u32 s{sT0}, s{sidx}, {base_dw}"); I(f"s_lshl_b32 s{sT0}, s{sT0}, 2")
        I(f"v_mov_b32 v{vT}, 0"); I(f"s_mov_b32 s{sT3}, 0")
        self.a.label(f"{self.L}{name}_l")
        I(f"buffer_load_dword v{vT+1}, v{vT}, {srd(S_DBG)}, s{sT0} offen sc1")
        I("s_waitcnt vmcnt(0)")
        I(f"v_readfirstlane_b32 s{sT2}, v{vT+1}")
        I(f"s_add_u32 s{sT3}, s{sT3}, 1")
        I(f"s_cmp_ge_u32 s{sT3}, 200000"); I(f"s_cbranch_scc1 {self.L}{name}_w")
        I(f"s_cmp_lt_u32 s{sT2}, {target}"); I(f"s_cbranch_scc1 {self.L}{name}_l")
        self.a.label(f"{self.L}{name}_w")
        I("s_barrier")

    def kv_reduce(self):
        I = self.I; br = self.br
        L = WF1
        acc = ACC0
        buf = XF
        if br == 0:
            I(f"s_and_b32 s{sT0}, s{sWAVE}, 1"); I(f"s_lshr_b32 s{sT2}, s{sWAVE}, 1")
            I(f"s_lshl_b32 s{sT3}, s{sT0}, 12"); I(f"s_lshl_b32 s{sT4}, s{sT2}, 10"); I(f"s_add_u32 s{sT3}, s{sT3}, s{sT4}")
            I(f"s_add_u32 s{sT3}, s{sT3}, s{sPART}")
            for p in range(16):
                I(f"buffer_load_dwordx4 {vr(buf+4*p,4)}, v{vL16}, {srd(S_WS)}, s{sT3} offen sc1")
                I(f"s_add_u32 s{sT3}, s{sT3}, {PART_STRIDE}")
            I(f"s_lshl_b32 s{sT3}, s{sWAVE}, 7"); I(f"s_add_u32 s{sT3}, s{sT3}, s{sPART}"); I(f"s_add_u32 s{sT3}, s{sT3}, 8192")
            I(f"s_and_b32 s{sT3}, s{sT3}, s{sT3}")
            I(f"v_lshlrev_b32 v{vT}, 2, v{vLANE}")
            zb = XF + 64
            for p in range(16):
                I(f"buffer_load_dword v{zb+p}, v{vT}, {srd(S_WS)}, s{sT3} offen sc1")
                I(f"s_add_u32 s{sT3}, s{sT3}, {PART_STRIDE}")
            I("s_waitcnt vmcnt(16)")
            for j in range(4): I(f"v_add_f32 v{acc+j}, v{buf+j}, v{buf+4+j}")
            for p in range(2, 16):
                for j in range(4): I(f"v_add_f32 v{acc+j}, v{acc+j}, v{buf+4*p+j}")
            I(f"v_cvt_pk_bf16_f32 v{acc+4}, v{acc}, v{acc+1}"); I(f"v_cvt_pk_bf16_f32 v{acc+5}, v{acc+2}, v{acc+3}")
            I(f"s_lshl_b32 s{sT3}, s{sT0}, 11"); I(f"s_lshl_b32 s{sT4}, s{sT2}, 3"); I(f"s_add_u32 s{sT3}, s{sT3}, s{sT4}")
            I(f"v_lshlrev_b32 v{vT}, 5, v{vLANE}"); I(f"v_add_u32 v{vT}, s{sT3}, v{vT}")
            I(f"ds_write_b64 v{vT}, {vr(acc+4,2)} offset:{KVT}")
            I("s_waitcnt vmcnt(0)")
            I(f"v_add_f32 v{acc}, v{zb}, v{zb+1}")
            for p in range(2, 16): I(f"v_add_f32 v{acc}, v{acc}, v{zb+p}")
            I(f"v_cvt_pk_bf16_f32 v{acc}, v{acc}, v{acc}")
            I(f"s_lshl_b32 s{sT3}, s{sWAVE}, 6"); I(f"v_lshlrev_b32 v{vT}, 1, v{vLANE}"); I(f"v_add_u32 v{vT}, s{sT3}, v{vT}")
            I(f"s_cmp_lt_u32 s{sWAVE}, 4"); I(f"s_cbranch_scc0 {self.L}zskip")
            I("s_mov_b64 exec, 0xffffffff")
            I(f"ds_write_b16 v{vT}, v{acc} offset:{KVT+4096}")
            I("s_mov_b64 exec, -1")
            self.a.label(f"{self.L}zskip")
        else:
            I(f"s_and_b32 s{sT0}, s{sWAVE}, 1"); I(f"s_bfe_u32 s{sT2}, s{sWAVE}, 0x10001")
            I(f"s_lshl_b32 s{sT3}, s{sT0}, 11"); I(f"s_lshl_b32 s{sT4}, s{sT2}, 10"); I(f"s_add_u32 s{sT3}, s{sT3}, s{sT4}")
            I(f"s_add_u32 s{sT3}, s{sT3}, s{sPART}")
            for p in range(16):
                I(f"buffer_load_dwordx4 {vr(buf+4*p,4)}, v{vL16}, {srd(S_WS)}, s{sT3} offen sc1")
                I(f"s_add_u32 s{sT3}, s{sT3}, {PART_STRIDE}")
            I(f"s_lshl_b32 s{sT3}, s{sT0}, 7"); I(f"s_add_u32 s{sT3}, s{sT3}, s{sPART}"); I(f"s_add_u32 s{sT3}, s{sT3}, 8192")
            I(f"v_lshlrev_b32 v{vT}, 2, v{vLANE}")
            zb = XF + 64
            for p in range(16):
                I(f"buffer_load_dword v{zb+p}, v{vT}, {srd(S_WS)}, s{sT3} offen sc1")
                I(f"s_add_u32 s{sT3}, s{sT3}, {PART_STRIDE}")
            I("s_waitcnt vmcnt(16)")
            for j in range(4): I(f"v_add_f32 v{acc+j}, v{buf+j}, v{buf+4+j}")
            for p in range(2, 16):
                for j in range(4): I(f"v_add_f32 v{acc+j}, v{acc+j}, v{buf+4*p+j}")
            I(f"v_cvt_pk_bf16_f32 v{acc+4}, v{acc}, v{acc+1}"); I(f"v_cvt_pk_bf16_f32 v{acc+5}, v{acc+2}, v{acc+3}")
            I(f"s_lshl_b32 s{sT3}, s{sT0}, 11"); I(f"s_lshl_b32 s{sT4}, s{sT2}, 3"); I(f"s_add_u32 s{sT3}, s{sT3}, s{sT4}")
            I(f"v_add_u32 v{vT}, s{sT3}, v{vL16}")
            I(f"s_cmp_lt_u32 s{sWAVE}, 4"); I(f"s_cbranch_scc0 {self.L}rskip")
            I(f"ds_write_b64 v{vT}, {vr(acc+4,2)} offset:{KVT}")
            self.a.label(f"{self.L}rskip")
            I("s_waitcnt vmcnt(0)")
            I(f"v_add_f32 v{acc}, v{zb}, v{zb+1}")
            for p in range(2, 16): I(f"v_add_f32 v{acc}, v{acc}, v{zb+p}")
            I(f"v_cvt_pk_bf16_f32 v{acc}, v{acc}, v{acc}")
            I(f"s_lshl_b32 s{sT3}, s{sT0}, 6"); I(f"v_lshlrev_b32 v{vT}, 1, v{vLANE}"); I(f"v_add_u32 v{vT}, s{sT3}, v{vT}")
            I(f"s_cmp_lt_u32 s{sWAVE}, 2"); I(f"s_cbranch_scc0 {self.L}zskip")
            I("s_mov_b64 exec, 0xffffffff")
            I(f"ds_write_b16 v{vT}, v{acc} offset:{KVT+4096}")
            I("s_mov_b64 exec, -1")
            self.a.label(f"{self.L}zskip")
        I("s_waitcnt lgkmcnt(0)")
        I("s_barrier")

    def o_stage(self, PHQ):
        I = self.I; br = self.br
        R = E; Z = E + 8; A0 = E + 16; A1 = E + 24; D0 = ACC0; D1 = ACC1; OF = XF
        h32 = vT
        if br == 0:
            I(f"s_lshl_b32 s{sT0}, s{sFH}, 11"); I(f"v_lshlrev_b32 v{h32}, 5, v{vLANE}"); I(f"v_add_u32 v{h32}, s{sT0}, v{h32}")
            I(f"ds_read_b128 {vr(R,4)}, v{h32} offset:{KVT}"); I(f"ds_read_b128 {vr(R+4,4)}, v{h32} offset:{KVT+16}")
            I(f"v_lshrrev_b32 v{h32+1}, 5, v{vLANE}"); I(f"v_lshlrev_b32 v{h32+1}, 5, v{h32+1}")
            I(f"s_lshl_b32 s{sT0}, s{sFH}, 7"); I(f"v_add_u32 v{h32+1}, s{sT0}, v{h32+1}")
            ZZ = XF + 16
            for a in range(2):
                I(f"ds_read_b128 {vr(ZZ+8*a,4)}, v{h32+1} offset:{KVT+4096+a*64}"); I(f"ds_read_b128 {vr(ZZ+8*a+4,4)}, v{h32+1} offset:{KVT+4096+a*64+16}")
            I("s_waitcnt lgkmcnt(0)")
            for j in range(8):
                I(f"v_cndmask_b32 v{A0+j}, v{R+j}, v{ZZ+j}, s[{sMB}:{sMB+1}]")
                I(f"v_cndmask_b32 v{A1+j}, v{ZZ+8+j}, v{R+j}, s[{sMB}:{sMB+1}]")
            I(f"v_mfma_f32_32x32x16_bf16 {vr(D0,16)}, {vr(A0,4)}, {vr(PHQ,4)}, 0")
            I(f"v_mfma_f32_32x32x16_bf16 {vr(D1,16)}, {vr(A1,4)}, {vr(PHQ+8,4)}, 0")
            I(f"v_mfma_f32_32x32x16_bf16 {vr(D0,16)}, {vr(A0+4,4)}, {vr(PHQ+4,4)}, {vr(D0,16)}")
            I(f"v_mfma_f32_32x32x16_bf16 {vr(D1,16)}, {vr(A1+4,4)}, {vr(PHQ+12,4)}, {vr(D1,16)}")
        else:
            I(f"s_lshl_b32 s{sT0}, s{sFH}, 11"); I(f"v_add_u32 v{h32}, s{sT0}, v{vL16}")
            I(f"ds_read_b128 {vr(R,4)}, v{h32} offset:{KVT}")
            I(f"v_lshrrev_b32 v{h32+1}, 5, v{vLANE}"); I(f"v_lshlrev_b32 v{h32+1}, 5, v{h32+1}")
            I(f"s_lshl_b32 s{sT0}, s{sFH}, 6"); I(f"v_add_u32 v{h32+1}, s{sT0}, v{h32+1}")
            I(f"ds_read_b128 {vr(Z,4)}, v{h32+1} offset:{KVT+4096}"); I(f"ds_read_b128 {vr(Z+4,4)}, v{h32+1} offset:{KVT+4096+16}")
            I("s_waitcnt lgkmcnt(0)")
            for j in range(4):
                I(f"v_cndmask_b32 v{A0+j}, v{R+j}, v{Z+j}, s[{sMB}:{sMB+1}]")
                I(f"v_cndmask_b32 v{A1+j}, v{Z+4+j}, v{R+j}, s[{sMB}:{sMB+1}]")
            I(f"v_mfma_f32_32x32x16_bf16 {vr(D0,16)}, {vr(A0,4)}, {vr(PHQ,4)}, 0")
            I(f"v_mfma_f32_32x32x16_bf16 {vr(D1,16)}, {vr(A1,4)}, {vr(PHQ+4,4)}, 0")
        I(f"v_add_f32 v{E}, s{sEPS}, v{D0+8}"); I(f"v_add_f32 v{E+1}, s{sEPS}, v{D1}")
        I(f"v_rcp_f32 v{E}, v{E}"); I(f"v_rcp_f32 v{E+1}, v{E+1}")
        for r in range(8): I(f"v_mul_f32 v{D0+r}, v{D0+r}, v{E}")
        for r in range(8): I(f"v_mul_f32 v{D1+8+r}, v{D1+8+r}, v{E+1}")
        for j in range(4): I(f"v_cvt_pk_bf16_f32 v{OF+j}, v{D0+2*j}, v{D0+2*j+1}")
        for j in range(4): I(f"v_cvt_pk_bf16_f32 v{OF+4+j}, v{D1+8+2*j}, v{D1+8+2*j+1}")
        I(f"s_lshl_b32 s{sT0}, s{sTG}, 15"); I(f"s_lshl_b32 s{sT2}, s{sHG}, 12"); I(f"s_add_u32 s{sT0}, s{sT0}, s{sT2}")
        I(f"s_lshl_b32 s{sT2}, s{sFH}, 11"); I(f"s_add_u32 s{sT0}, s{sT0}, s{sT2}"); I(f"s_add_u32 s{sT0}, s{sT0}, s{sOX}")
        I(f"buffer_store_dwordx4 {vr(OF,4)}, v{vL16}, {srd(S_WS)}, s{sT0} offen sc1")
        I(f"buffer_store_dwordx4 {vr(OF+4,4)}, v{vL16}, {srd(S_WS)}, s{sT0} offen offset:1024 sc1")
        I("s_waitcnt vmcnt(0)")
        I("s_barrier")
        self.signal(16 + self.br*16, sTB, "s2")

    def wo_frags(self, half, base):
        I = self.I
        a = E + 40
        if half == 0:
            t, u = vT, vT + 1
            I(f"v_lshrrev_b32 v{t}, 5, v{vLANE}"); I(f"v_bfe_u32 v{u}, v{vLANE}, 2, 2"); I(f"v_lshl_add_u32 v{t}, v{t}, 2, v{u}")
            I(f"v_lshlrev_b32 v{a}, 8, v{t}")
            I(f"v_lshlrev_b32 v{u}, 2, v{u}")
            I(f"v_bfe_u32 v{t}, v{vLANE}, 4, 1"); I(f"v_lshlrev_b32 v{t}, 1, v{t}")
            I(f"v_bfe_u32 v{a+1}, v{vLANE}, 1, 1"); I(f"v_add_u32 v{t}, v{t}, v{a+1}")
            I(f"s_and_b32 s{sT0}, s{sWAVE}, 3"); I(f"s_lshl_b32 s{sT0}, s{sT0}, 2"); I(f"v_add_u32 v{t}, s{sT0}, v{t}")
            I(f"v_xor_b32 v{t}, v{t}, v{u}"); I(f"v_lshl_add_u32 v{a}, v{t}, 4, v{a}")
            I(f"v_and_b32 v{u}, 1, v{vLANE}"); I(f"v_lshl_add_u32 v{a}, v{u}, 3, v{a}")
            self.wo_addr = a
        I(f"v_add_u32 v{a+1}, {base}, v{a}")
        for H in range(16):
            d = XF + 64*half + 4*H
            I(f"ds_read_b64_tr_b16 {vr(d,2)}, v{a+1} offset:{H*4096}")
            I(f"ds_read_b64_tr_b16 {vr(d+2,2)}, v{a+1} offset:{H*4096 + 2048}")
            if H % 4 == 3: I("s_waitcnt lgkmcnt(0)")

    def out_gemm(self):
        I = self.I; br = self.br
        I(f"s_lshr_b32 s{sT0}, s{sHG}, 2"); I(f"s_lshl_b32 s{sT0}, s{sT0}, 16"); I(f"s_add_u32 s{sT0}, s{sT0}, s{sOX}")
        I(f"s_lshl_b32 s{sT1}, s{sWAVE}, 10"); I(f"s_add_u32 s{sT0}, s{sT0}, s{sT1}")
        for j in range(8):
            I(f"s_add_u32 m0, s{sT1}, {OT + j*8192}")
            I(f"buffer_load_dwordx4 v{vL16}, {srd(S_WS)}, s{sT0} offen sc1 lds")
            I(f"s_add_u32 s{sT0}, s{sT0}, 8192")
        I("s_waitcnt vmcnt(0)")
        I("s_barrier")
        a = E
        I(f"s_lshr_b32 s{sT0}, s{sWAVE}, 2"); I(f"s_lshl_b32 s{sT0}, s{sT0}, 15"); I(f"s_add_u32 s{sT0}, s{sT0}, {OT}")
        I(f"v_add_u32 v{a}, s{sT0}, v{vL16}")
        OB = [WF0, WF1]
        D = ACC0
        def rd(g): return [f"ds_read_b128 {vr(OB[g&1]+4*s,4)}, v{a} offset:{(4*g+s)*1024}" for s in range(4)]
        for x in rd(0): I(x)
        for g in range(8):
            if g < 7:
                for x in rd(g+1): I(x)
            for s in range(4):
                rem = (4 if g < 7 else 0) + (3 - s)
                I(f"s_waitcnt lgkmcnt({rem})")
                H = 4*g + s
                cin = "0" if H == 0 else vr(D,16)
                I(f"v_mfma_f32_32x32x16_bf16 {vr(D,16)}, {vr(XF+4*H,4)}, {vr(OB[g&1]+4*s,4)}, {cin}")
        P = E + 8
        for j in range(8): I(f"v_cvt_pk_bf16_f32 v{P+j}, v{D+2*j}, v{D+2*j+1}")
        I(f"v_permlane32_swap_b32 v{P}, v{P+2}"); I(f"v_permlane32_swap_b32 v{P+1}, v{P+3}")
        I(f"v_permlane32_swap_b32 v{P+4}, v{P+6}"); I(f"v_permlane32_swap_b32 v{P+5}, v{P+7}")
        t = vT
        I(f"v_and_b32 v{t}, 31, v{vLANE}"); I(f"v_lshlrev_b32 v{t}, 11, v{t}")
        I(f"v_lshrrev_b32 v{t+1}, 5, v{vLANE}"); I(f"v_lshl_add_u32 v{t}, v{t+1}, 4, v{t}")
        I(f"s_lshl_b32 s{sT0}, s{sTB}, 7"); I(f"s_lshr_b32 s{sT2}, s{sHG}, 2"); I(f"s_lshl_b32 s{sT2}, s{sT2}, 6"); I(f"s_add_u32 s{sT0}, s{sT0}, s{sT2}")
        I(f"s_lshr_b32 s{sT2}, s{sWAVE}, 2"); I(f"s_lshl_b32 s{sT2}, s{sT2}, 5"); I(f"s_add_u32 s{sT0}, s{sT0}, s{sT2}")
        I(f"s_lshl_b32 s{sT0}, s{sT0}, 11")
        I(f"s_and_b32 s{sT2}, s{sHG}, 3"); I(f"s_lshl_b32 s{sT2}, s{sT2}, 8"); I(f"s_add_u32 s{sT0}, s{sT0}, s{sT2}")
        I(f"s_and_b32 s{sT2}, s{sWAVE}, 3"); I(f"s_lshl_b32 s{sT2}, s{sT2}, 6"); I(f"s_add_u32 s{sT0}, s{sT0}, s{sT2}")
        I(f"s_add_u32 s{sT0}, s{sT0}, {br*1024}")
        I(f"buffer_store_dwordx4 {vr(P,4)}, v{t}, {srd(S_OUT)}, s{sT0} offen")
        I(f"buffer_store_dwordx4 {vr(P+4,4)}, v{t}, {srd(S_OUT)}, s{sT0} offen offset:32")

    def dump_ts(self, n):
        I = self.I
        if not self.o.get("ts"): return
        I("s_waitcnt lgkmcnt(0)")
        I(f"s_cmp_eq_u32 s{sWAVE}, 0"); I(f"s_cbranch_scc0 {self.L}tsd")
        I(f"s_lshl_b32 s{sT0}, s2, 7"); I(f"s_add_u32 s{sT0}, s{sT0}, {12<<20}")
        I(f"v_mov_b32 v{vT}, 0"); I("s_mov_b64 exec, 1")
        for k in range(n):
            I(f"v_mov_b32 v{vT+1}, s{sTS+2*k}")
            I(f"buffer_store_dword v{vT+1}, v{vT}, {srd(S_WS)}, s{sT0} offen offset:{4*k}")
        I("s_mov_b64 exec, -1")
        self.a.label(f"{self.L}tsd")

    def build(self):
        I = self.I; br = self.br
        self.prologue()
        self.k_phase()
        self.stamp(1)
        self.k_epi()
        self.wait_tags({("v", c) for c in range(8)})
        I("s_barrier")
        hv = E + 44
        I(f"v_add_u32 v{hv}, {WV}, v{vWR}")
        for x in self.gemm_phase(0, ACC1, True, hv): I(x)
        self.stamp(2)
        self.v_epi_and_kv()
        self.stamp(3)
        I(f"s_lshl_b32 s{sT1}, s{sWAVE}, 10")
        I(f"s_and_b32 s{sT0}, s{sHG}, 3"); I(f"s_lshl_b32 s{sT0}, s{sT0}, 8"); I(f"s_lshl_b32 s{sT2}, s{sWAVE}, 12"); I(f"s_add_u32 s{sT2}, s{sT2}, s{sT0}")
        self.dma_wo(0, WO1)
        I(f"v_add_u32 v{hv}, {WK}, v{vWR}")
        for x in self.gemm_phase(0, ACC0, False, hv): I(x)
        self.stamp(4)
        I("s_barrier")
        I(f"s_lshl_b32 s{sT1}, s{sWAVE}, 10")
        I(f"s_and_b32 s{sT0}, s{sHG}, 3"); I(f"s_lshl_b32 s{sT0}, s{sT0}, 8"); I(f"s_lshl_b32 s{sT2}, s{sWAVE}, 12"); I(f"s_add_u32 s{sT2}, s{sT2}, s{sT0}")
        self.dma_wo(1, WO2)
        for x in (self.feat_A(ACC0) if br == 0 else self.feat_B(ACC0)): I(x)
        PHQ = WF0
        self.stamp(5)
        self.poll(self.br*8, sHG, 16, "p1")
        self.stamp(6)
        self.kv_reduce()
        self.stamp(7)
        self.o_stage(PHQ)
        self.stamp(8)
        self.wo_frags(0, WO1); self.wo_frags(1, WO2)
        I("s_waitcnt lgkmcnt(0)")
        self.poll(16 + self.br*16, sTB, 8, "p2")
        self.stamp(9)
        self.out_gemm()
        self.stamp(10)
        self.dump_ts(11)
        I("s_endpgm")

def generate(opts):
    progs = []
    nn = 0
    for br in (0, 1):
        p = Prog(br, opts); p.build(); nn += p.a.finalize(); progs.append(p)
    hdr = open("cdna_kernels/" + KNAME[:-7] + ".s.ref").read().split("; Override launch")[0]
    s = hdr
    s += "; Override launch geometry by editing the next line (default: block=256,\n"
    s += f"; @launch grid=(256,1,1) block=(512,1,1) lds={LDS_BYTES}\n"
    s += '.amdgcn_target "amdgcn-amd-amdhsa--gfx950"\n.text\n'
    s += f".globl {KNAME}\n.p2align 8\n.type {KNAME},@function\n{KNAME}:\n"
    s += "  s_cmp_ge_u32 s2, 256\n  s_cbranch_scc1 L_exit\n"
    s += "  s_bitcmp1_b32 s2, 2\n  s_cbranch_scc1 L_progB\n"
    s += progs[0].a.text() + "\n"
    s += "L_exit:\n  s_endpgm\n"
    s += ".p2align 8\nL_progB:\n" + progs[1].a.text() + "\n"
    s += f""".section .rodata,"a"
.p2align 6
.amdhsa_kernel {KNAME}
  .amdhsa_next_free_vgpr 256
  .amdhsa_next_free_sgpr 102
  .amdhsa_accum_offset 256
  .amdhsa_group_segment_fixed_size 0
  .amdhsa_kernarg_size 80
  .amdhsa_user_sgpr_count 2
  .amdhsa_user_sgpr_kernarg_segment_ptr 1
  .amdhsa_system_sgpr_workgroup_id_x 1
.end_amdhsa_kernel
"""
    return s, nn

if __name__ == "__main__":
    opts = {}
    out = sys.argv[1] if len(sys.argv) > 1 else "k1.s"
    for a in sys.argv[2:]:
        k, _, v = a.partition("="); opts[k] = int(v) if v else 1
    s, nn = generate(opts)
    open(out, "w").write(s)
    print("wrote", out, "lines", s.count("\n"), "nops added", nn)
```
